```python
import torch

def _softmax(x, axis=-1):
    return torch.softmax(x, dim=axis)
def _gelu(x):
    return torch.nn.functional.gelu(x, approximate="tanh")
def _silu(x):
    return torch.nn.functional.silu(x)
def _sigmoid(x):
    return torch.sigmoid(x)
def _layernorm(x, axis=-1, eps=1e-5):
    m = x.mean(dim=axis, keepdim=True)
    v = x.var(dim=axis, keepdim=True, unbiased=False)
    return (x - m) / torch.sqrt(v + eps)
def _scatter_add(tgt, idx, src, axis=0):
    return tgt.clone().index_add_(axis, idx, src)
def _segment_sum(src, seg, n):
    out = torch.zeros((n,) + src.shape[1:], dtype=src.dtype)
    return out.index_add_(0, seg, src)
def _pad(x, pw):
    flat = tuple(v for pair in reversed(pw) for v in pair)
    return torch.nn.functional.pad(x, flat)

kernel_name = 'standalone__qk_norm__prompt'

def setup_inputs():

    _w = (lambda a: (lambda t: t.to(torch.bfloat16) if t.is_floating_point() else t)(torch.as_tensor(a)))
    B, H, S, D = 4, 16, 2048, 448
    Dh = D // H
    return {
        "q": _w((lambda *s: torch.randn(*s, dtype=torch.bfloat16) * 0.05)(B, H, S, Dh)),
        "k": _w((lambda *s: torch.randn(*s, dtype=torch.bfloat16) * 0.05)(B, H, S, Dh)),
        "v": _w((lambda *s: torch.randn(*s, dtype=torch.bfloat16) * 0.8)(B, H, S, Dh)),
        "t": _w(torch.abs((lambda *s: torch.randn(*s, dtype=torch.bfloat16) * 0.8)(H)) + 1.0),
    }

def reference(q, k, v, t):
    eps = 1e-6
    qn = q / (torch.sqrt((q * q).sum(axis=-1, keepdims=True)) + eps)
    kn = k / (torch.sqrt((k * k).sum(axis=-1, keepdims=True)) + eps)
    logits = torch.einsum('bhqd,bhkd->bhqk', qn, kn) * t[None, :, None, None]
    attn = _softmax(logits, axis=-1)
    return torch.einsum('bhqk,bhkd->bhqd', attn, v)
```

```python
import sys

HEAD_BYTES = 2048*56
CHUNK = 256
NCH = 8
CH_BYTES = CHUNK*56
KSLOT = 16384
VBASE = 32768
LDS_BYTES = 65536

class A:
    def __init__(s): s.l=[]
    def __call__(s, x):
        for y in x.split("\n"):
            s.l.append("    "+y.strip())
    def label(s, x): s.l.append(x+":")
    def text(s): return "\n".join(s.l)+"\n"

def vr(b,n): return f"v[{b}:{b+n-1}]"

S_HEAD=14; S_QUART=15; S_WAVE=16; S_T=17; S_TMP=18; S_TMP2=19
SRD_Q=20; SRD_K=24; SRD_V=28; SRD_O=32
S_SLOW=36
S_CNT=37
S_SOFF=38
S_MASK=39
S_EXEC=40
S_J=[42,43,44,45]
S_HB=46

V_KA=1; V_VA=2; V_OO=3
KF=[4,12]; VF=[20,28]; SS=[36,52]; PP=[68,76]; BIAS=84
QF=[100,108,116,124]; OO=[132,148,164,180]
V_M=[196,197,198,199]; V_C=200
TMP=204

def norm_row(a, raw, tmp, scale_reg=None, acc=None):
    a0,a1,r0,r1 = acc,acc+1,acc+2,acc+3
    a(f"v_dot2_f32_bf16 v{a0}, v{raw}, v{raw}, 0")
    a(f"v_dot2_f32_bf16 v{a1}, v{raw+1}, v{raw+1}, 0")
    for i in range(2,14):
        acc_r = a0 if i%2==0 else a1
        a(f"v_dot2_f32_bf16 v{acc_r}, v{raw+i}, v{raw+i}, v{acc_r}")
    for i in range(14):
        a(f"v_lshlrev_b32 v{tmp+2*i}, 16, v{raw+i}")
        a(f"v_and_b32 v{tmp+2*i+1}, s{S_MASK}, v{raw+i}")
    a(f"v_add_f32 v{a0}, v{a0}, v{a1}")
    a(f"v_sqrt_f32 v{a0}, v{a0}")
    a("s_nop 0")
    a(f"v_add_f32 v{a0}, 0x358637bd, v{a0}")
    a(f"v_rcp_f32 v{r0}, v{a0}")
    a("s_nop 0")
    if scale_reg is not None:
        a(f"v_mul_f32 v{r0}, v{r0}, v{scale_reg}")
    for i in range(14):
        a(f"v_pk_mul_f32 {vr(tmp+2*i,2)}, {vr(tmp+2*i,2)}, {vr(r0,2)} op_sel_hi:[1,0]")
    for i in range(14):
        a(f"v_cvt_pk_f16_f32 v{raw+i}, v{tmp+2*i}, v{tmp+2*i+1}")

def load_row(a, dst, voff, srd, soff):
    a(f"buffer_load_dwordx4 {vr(dst,4)}, v{voff}, s[{srd}:{srd+3}], {soff} offen")
    a(f"buffer_load_dwordx4 {vr(dst+4,4)}, v{voff}, s[{srd}:{srd+3}], {soff} offen offset:16")
    a(f"buffer_load_dwordx4 {vr(dst+8,4)}, v{voff}, s[{srd}:{srd+3}], {soff} offen offset:32")
    a(f"buffer_load_dwordx2 {vr(dst+12,2)}, v{voff}, s[{srd}:{srd+3}], {soff} offen offset:48")

def k_reads(T, buf):
    off=T*2048
    return [f"ds_read_b128 {vr(KF[buf],4)}, v{V_KA} offset:{off}",
            f"ds_read_b128 {vr(KF[buf]+4,4)}, v{V_KA} offset:{off+1024}"]
def v_reads(T, buf):
    off=VBASE+T*2048
    return [f"ds_read_b64_tr_b16 {vr(VF[buf]+2*i,2)}, v{V_VA} offset:{off+512*i}" for i in range(4)]

def main_loop(a, slow, tag):
    NQ=4; NT=8; N=NQ*NT
    nv={}
    def add(T,j,g,ins): nv.setdefault(((T*NQ+j)%N,g),[]).append(ins)
    for T in range(NT):
        Tn=(T+1)%NT
        kr=k_reads(Tn,Tn%2); vrd=v_reads(Tn,Tn%2)
        add(T,0,3,"s_waitcnt lgkmcnt(0)")
        if T==NT-1:
            add(T,1,0,"s_barrier")
            add(T,1,0,f"v_xor_b32 v{V_KA}, {KSLOT}, v{V_KA}")
            add(T,1,0,f"v_xor_b32 v{V_VA}, {KSLOT}, v{V_VA}")
        add(T,1,1,kr[0]); add(T,1,2,kr[1]); add(T,1,3,vrd[0])
        add(T,2,0,vrd[1]); add(T,2,1,vrd[2]); add(T,2,2,vrd[3])
        add(T,3,0,"s_waitcnt lgkmcnt(4)")
    a.label(f"L_main_{tag}")
    for n in range(N):
        T,j=divmod(n,NQ)
        T1,j1=divmod((n+1)%N,NQ)
        Tm,jm=divmod((n-1)%N,NQ)
        s=SS[n%2]; s1=SS[(n+1)%2]; p=PP[n%2]; pm=PP[(n-1)%2]; sm=SS[(n-1)%2]
        cin = "0" if slow else vr(BIAS,16)
        M=[f"v_mfma_f32_32x32x16_bf16 {vr(OO[jm],16)}, {vr(VF[Tm%2],4)}, {vr(pm,4)}, {vr(OO[jm],16)}",
           f"v_mfma_f32_32x32x16_f16 {vr(s1,16)}, {vr(KF[T1%2],4)}, {vr(QF[j1],4)}, {cin}",
           f"v_mfma_f32_32x32x16_f16 {vr(s1,16)}, {vr(KF[T1%2]+4,4)}, {vr(QF[j1]+4,4)}, {vr(s1,16)}",
           f"v_mfma_f32_32x32x16_bf16 {vr(OO[jm],16)}, {vr(VF[Tm%2]+4,4)}, {vr(pm+4,4)}, {vr(OO[jm],16)}"]
        def E(i):
            if slow:
                return [f"v_mul_f32 v{s+i}, v{s+i}, v{V_C}", f"v_sub_f32 v{s+i}, v{s+i}, v{V_M[j]}", f"v_exp_f32 v{s+i}, v{s+i}"]
            return [f"v_exp_f32 v{s+i}, v{s+i}"]
        def C(i):
            if i<0: return [f"v_cvt_pk_bf16_f32 v{pm+7}, v{sm+14}, v{sm+15}"]
            return [f"v_cvt_pk_bf16_f32 v{p+i}, v{s+2*i}, v{s+2*i+1}"]
        for g in range(4):
            a(M[g])
            for x in nv.get((n,g),[]): a(x)
            for x in E(4*g)+E(4*g+1)+C(2*g-1)+E(4*g+2)+E(4*g+3)+C(2*g): a(x)
    a(f"s_sub_u32 s{S_CNT}, s{S_CNT}, 1")
    a(f"s_cmp_lg_u32 s{S_CNT}, 0")
    a(f"s_cbranch_scc1 L_main_{tag}")
    n=N-1; T,j=divmod(n,NQ); s=SS[n%2]; p=PP[n%2]
    a(f"v_cvt_pk_bf16_f32 v{p+7}, v{s+14}, v{s+15}")
    a("s_nop 1")
    a(f"v_mfma_f32_32x32x16_bf16 {vr(OO[j],16)}, {vr(VF[T%2],4)}, {vr(p,4)}, {vr(OO[j],16)}")
    a(f"v_mfma_f32_32x32x16_bf16 {vr(OO[j],16)}, {vr(VF[T%2]+4,4)}, {vr(p+4,4)}, {vr(OO[j],16)}")

def pipeline_fill(a, slow):
    a("s_barrier")
    for x in k_reads(0,0)+v_reads(0,0): a(x)
    a("s_waitcnt lgkmcnt(0)")
    cin = "0" if slow else vr(BIAS,16)
    a(f"v_mfma_f32_32x32x16_f16 {vr(SS[0],16)}, {vr(KF[0],4)}, {vr(QF[0],4)}, {cin}")
    a(f"v_mfma_f32_32x32x16_f16 {vr(SS[0],16)}, {vr(KF[0]+4,4)}, {vr(QF[0]+4,4)}, {vr(SS[0],16)}")
    a("s_nop 15")

def gen():
    a=A()
    a("s_cmp_ge_u32 s2, 256")
    a("s_cbranch_scc1 L_end")
    a("s_load_dwordx8 s[4:11], s[0:1], 0")
    a("s_load_dwordx2 s[12:13], s[0:1], 32")
    a(f"v_lshrrev_b32 v1, 6, v0")
    a(f"s_and_b32 s{S_HEAD}, s2, 7")
    a(f"s_lshl_b32 s{S_HEAD}, s{S_HEAD}, 3")
    a(f"s_lshr_b32 s{S_TMP}, s2, 5")
    a(f"s_add_u32 s{S_HEAD}, s{S_HEAD}, s{S_TMP}")
    a(f"v_readfirstlane_b32 s{S_WAVE}, v1")
    a(f"s_lshr_b32 s{S_QUART}, s2, 3")
    a(f"s_and_b32 s{S_QUART}, s{S_QUART}, 3")
    a(f"s_mul_i32 s{S_HB}, s{S_HEAD}, {HEAD_BYTES}")
    a(f"s_mov_b32 s{S_MASK}, 0xffff0000")
    a(f"s_and_b32 s{S_TMP}, s{S_HEAD}, 15")
    a(f"s_lshr_b32 s{S_TMP2}, s{S_TMP}, 1")
    a(f"s_lshl_b32 s{S_TMP2}, s{S_TMP2}, 2")
    a("s_waitcnt lgkmcnt(0)")
    a(f"s_load_dword s{S_T}, s[10:11], s{S_TMP2}")
    for srd,p in ((SRD_Q,4),(SRD_K,6),(SRD_V,8),(SRD_O,12)):
        a(f"s_add_u32 s{srd}, s{p}, s{S_HB}")
        a(f"s_addc_u32 s{srd+1}, s{p+1}, 0")
        a(f"s_and_b32 s{srd+1}, s{srd+1}, 0xffff")
        a(f"s_mov_b32 s{srd+2}, {HEAD_BYTES}")
        a(f"s_mov_b32 s{srd+3}, 0x00020000")
    a(f"v_and_b32 v1, 63, v0")
    a(f"s_cmp_ge_u32 s{S_WAVE}, 4")
    a("s_cbranch_scc1 L_helper")

    a(f"s_lshl_b32 s{S_TMP2}, s{S_QUART}, 9")
    a(f"s_lshl_b32 s{S_SOFF}, s{S_WAVE}, 7")
    a(f"s_add_u32 s{S_SOFF}, s{S_SOFF}, s{S_TMP2}")
    a(f"v_add_u32 v2, s{S_SOFF}, v1")
    a(f"v_mul_u32_u24 v2, 56, v2")
    a(f"s_mov_b32 s{S_TMP2}, {64*56}")
    RAW0=TMP; RAW1=TMP+16
    load_row(a, RAW0, 2, SRD_Q, "0")
    load_row(a, RAW1, 2, SRD_Q, f"s{S_TMP2}")
    a(f"v_and_b32 v3, 31, v1")
    a(f"v_add_u32 v3, s{S_SOFF}, v3")
    a(f"v_mul_u32_u24 v3, 56, v3")
    a(f"v_lshrrev_b32 v4, 5, v1")
    a(f"v_lshl_add_u32 v{V_OO}, v4, 3, v3")
    a("v_lshrrev_b32 v4, 5, v1")
    a("v_bfe_u32 v5, v1, 2, 2")
    a("v_lshl_add_u32 v4, v4, 2, v5")
    a("v_bfe_u32 v5, v1, 4, 1")
    a("v_bfe_u32 v6, v1, 1, 1")
    a("v_lshl_add_u32 v5, v5, 1, v6")
    a("v_bfe_u32 v6, v4, 1, 2")
    a("v_xor_b32 v5, v5, v6")
    a("v_lshlrev_b32 v5, 4, v5")
    a("v_lshl_add_u32 v5, v4, 6, v5")
    a("v_and_b32 v6, 1, v1")
    a(f"v_lshl_add_u32 v{V_VA}, v6, 3, v5")
    a(f"v_lshlrev_b32 v{V_KA}, 4, v1")
    for j in range(4): a(f"s_mov_b32 s{S_J[j]}, {1792*j}")
    for j in range(4):
        for r in range(16): a(f"v_mov_b32 v{OO[j]+r}, 0")
    for r in range(8):
        a(f"v_mov_b32 v{PP[1]+r}, 0")
        a(f"v_mov_b32 v{VF[1]+r}, 0")
    a(f"v_mov_b32 v{SS[1]+14}, 0")
    a(f"v_mov_b32 v{SS[1]+15}, 0")
    for r in (14,15):
        a(f"v_mov_b32 v{RAW0+r}, 0")
        a(f"v_mov_b32 v{RAW1+r}, 0")
    a("s_waitcnt lgkmcnt(0)")
    a(f"s_and_b32 s{S_TMP}, s{S_HEAD}, 1")
    a(f"s_lshl_b32 s{S_TMP}, s{S_TMP}, 4")
    a(f"s_lshr_b32 s{S_T}, s{S_T}, s{S_TMP}")
    a(f"s_and_b32 s{S_T}, s{S_T}, 0xffff")
    a(f"s_and_b32 s{S_TMP}, s{S_T}, 0x7fff")
    a(f"s_cmp_gt_u32 s{S_TMP}, 0x4130")
    a(f"s_cselect_b32 s{S_SLOW}, 1, 0")
    a(f"s_lshl_b32 s{S_T}, s{S_T}, 16")
    a(f"v_mov_b32 v{V_C}, s{S_T}")
    a(f"v_mul_f32 v{V_C}, 0x3fb8aa3b, v{V_C}")
    a(f"v_and_b32 v{V_C+1}, 0x7fffffff, v{V_C}")
    a(f"v_xor_b32 v{V_C+1}, 0x80000000, v{V_C+1}")
    for r in range(16): a(f"v_mov_b32 v{BIAS+r}, v{V_C+1}")
    a(f"v_mov_b32 v{V_C+2}, v{V_C}")
    a(f"s_cmp_eq_u32 s{S_SLOW}, 0")
    a("s_cbranch_scc1 L_qscale")
    a(f"v_mov_b32 v{V_C+2}, 1.0")
    a.label("L_qscale")
    T28=36; ACC=8
    a("s_waitcnt vmcnt(4)")
    norm_row(a, RAW0, T28, scale_reg=V_C+2, acc=ACC)
    a("s_waitcnt vmcnt(0)")
    norm_row(a, RAW1, T28, scale_reg=V_C+2, acc=ACC)
    a("s_nop 1")
    for RAW in (RAW0,RAW1):
        for i in range(4):
            a(f"v_permlane32_swap_b32 v{RAW+i}, v{RAW+4+i}")
            a(f"v_permlane32_swap_b32 v{RAW+8+i}, v{RAW+12+i}")
    a("s_nop 1")
    for t,RAW in ((0,RAW0),(2,RAW1)):
        for i in range(4):
            a(f"v_mov_b32 v{QF[t]+i}, v{RAW+i}")
            a(f"v_mov_b32 v{QF[t]+4+i}, v{RAW+8+i}")
            a(f"v_mov_b32 v{QF[t+1]+i}, v{RAW+4+i}")
            a(f"v_mov_b32 v{QF[t+1]+4+i}, v{RAW+12+i}")
    a(f"s_cmp_lg_u32 s{S_SLOW}, 0")
    a("s_cbranch_scc1 L_slow")
    pipeline_fill(a, False)
    a(f"s_mov_b32 s{S_CNT}, {NCH}")
    main_loop(a, False, "fast")
    a.label("L_epilogue")
    a("s_nop 15")
    a("s_nop 3")
    X=TMP; Y=TMP+1; R=TMP+2
    for j in range(4):
        o=OO[j]
        a(f"v_mov_b32 v{X}, v{o+12}")
        a(f"v_mov_b32 v{Y}, v{o+12}")
        a("s_nop 1")
        a(f"v_permlane32_swap_b32 v{X}, v{Y}")
        a("s_nop 1")
        a(f"v_rcp_f32 v{R}, v{Y}")
        a("s_nop 0")
        for r in range(16): a(f"v_mul_f32 v{o+r}, v{o+r}, v{R}")
        D=TMP+4+8*j
        for r in range(8): a(f"v_cvt_pk_bf16_f32 v{D+r}, v{o+2*r}, v{o+2*r+1}")
        for q in range(3):
            a(f"buffer_store_dwordx2 {vr(D+2*q,2)}, v{V_OO}, s[{SRD_O}:{SRD_O+3}], s{S_J[j]} offen offset:{16*q}")
        a("s_mov_b32 exec_hi, 0")
        a(f"buffer_store_dwordx2 {vr(D+6,2)}, v{V_OO}, s[{SRD_O}:{SRD_O+3}], s{S_J[j]} offen offset:48")
        a("s_mov_b32 exec_hi, -1")
    a("s_endpgm")

    a.label("L_slow")
    for j in range(4): a(f"v_mov_b32 v{V_M[j]}, 0xff800000")
    a(f"s_mov_b32 s{S_CNT}, {NCH}")
    a.label("L_max_chunk")
    a("s_barrier")
    for T in range(8):
        for x in k_reads(T,0): a(x)
        a("s_waitcnt lgkmcnt(0)")
        for j in range(4):
            a(f"v_mfma_f32_32x32x16_f16 {vr(SS[0],16)}, {vr(KF[0],4)}, {vr(QF[j],4)}, 0")
            a(f"v_mfma_f32_32x32x16_f16 {vr(SS[0],16)}, {vr(KF[0]+4,4)}, {vr(QF[j]+4,4)}, {vr(SS[0],16)}")
            a("s_nop 15")
            a("s_nop 3")
            for r in range(16):
                a(f"v_mul_f32 v{SS[0]+r}, v{SS[0]+r}, v{V_C}")
                a(f"v_max_f32 v{V_M[j]}, v{V_M[j]}, v{SS[0]+r}")
            a("s_nop 7")
    a(f"v_xor_b32 v{V_KA}, {KSLOT}, v{V_KA}")
    a(f"s_sub_u32 s{S_CNT}, s{S_CNT}, 1")
    a(f"s_cmp_lg_u32 s{S_CNT}, 0")
    a("s_cbranch_scc1 L_max_chunk")
    for j in range(4):
        a(f"v_mov_b32 v{TMP}, v{V_M[j]}")
        a(f"v_mov_b32 v{TMP+1}, v{V_M[j]}")
        a("s_nop 1")
        a(f"v_permlane32_swap_b32 v{TMP}, v{TMP+1}")
        a("s_nop 1")
        a(f"v_max_f32 v{V_M[j]}, v{TMP}, v{TMP+1}")
    a(f"v_mov_b32 v{SS[1]+14}, 0")
    a(f"v_mov_b32 v{SS[1]+15}, 0")
    pipeline_fill(a, True)
    a(f"s_mov_b32 s{S_CNT}, {NCH}")
    main_loop(a, True, "slow")
    a("s_branch L_epilogue")

    a.label("L_helper")
    a(f"s_sub_u32 s{S_TMP}, s{S_WAVE}, 4")
    a(f"s_lshl_b32 s{S_TMP}, s{S_TMP}, 6")
    a(f"v_add_u32 v2, s{S_TMP}, v1")
    a(f"v_mul_u32_u24 v3, 56, v2")
    HK=[8,40]; HV=[24,56]; HT=72; HACC=100
    load_row(a, HK[0], 3, SRD_K, "0")
    load_row(a, HV[0], 3, SRD_V, "0")
    a(f"s_mov_b32 s{S_SOFF}, {CH_BYTES}")
    load_row(a, HK[1], 3, SRD_K, f"s{S_SOFF}")
    load_row(a, HV[1], 3, SRD_V, f"s{S_SOFF}")
    a("v_lshrrev_b32 v4, 5, v2")
    a("v_and_b32 v5, 31, v2")
    a("v_lshlrev_b32 v5, 4, v5")
    a("v_lshl_add_u32 v4, v4, 11, v5")
    a("v_bfe_u32 v5, v2, 1, 2")
    for p in range(4):
        a(f"v_xor_b32 v6, {p}, v5")
        a("v_lshlrev_b32 v6, 4, v6")
        a(f"v_lshl_add_u32 v{104+p}, v2, 6, v6")
    for st in (0,1):
        a(f"v_mov_b32 v{HK[st]+14}, 0")
        a(f"v_mov_b32 v{HK[st]+15}, 0")
        a(f"v_mov_b32 v{HV[st]+14}, 0x3f80")
        a(f"v_mov_b32 v{HV[st]+15}, 0")
    a("s_waitcnt lgkmcnt(0)")
    a(f"s_and_b32 s{S_TMP}, s{S_HEAD}, 1")
    a(f"s_lshl_b32 s{S_TMP}, s{S_TMP}, 4")
    a(f"s_lshr_b32 s{S_T}, s{S_T}, s{S_TMP}")
    a(f"s_and_b32 s{S_TMP}, s{S_T}, 0x7fff")
    a(f"s_cmp_gt_u32 s{S_TMP}, 0x4130")
    a(f"s_cselect_b32 s{S_CNT}, {NCH}, {NCH//2}")
    a(f"s_mov_b32 s{S_TMP2}, 2")
    a.label("L_hloop")
    for st in (0,1):
        a("s_waitcnt vmcnt(8)")
        norm_row(a, HK[st], HT, acc=HACC)
        for p in range(4):
            a(f"ds_write_b128 v4, {vr(HK[st]+4*p,4)} offset:{st*KSLOT+512*p}")
        for p in range(4):
            a(f"ds_write_b128 v{104+p}, {vr(HV[st]+4*p,4)} offset:{VBASE+st*KSLOT}")
        a(f"s_and_b32 s{S_TMP}, s{S_TMP2}, 7")
        a(f"s_mul_i32 s{S_SOFF}, s{S_TMP}, {CH_BYTES}")
        a(f"s_add_u32 s{S_TMP2}, s{S_TMP2}, 1")
        a("s_waitcnt lgkmcnt(0)")
        load_row(a, HK[st], 3, SRD_K, f"s{S_SOFF}")
        load_row(a, HV[st], 3, SRD_V, f"s{S_SOFF}")
        a("s_barrier")
    a(f"s_sub_u32 s{S_CNT}, s{S_CNT}, 1")
    a(f"s_cmp_lg_u32 s{S_CNT}, 0")
    a("s_cbranch_scc1 L_hloop")
    a("s_barrier")
    a.label("L_end")
    a("s_endpgm")
    return a.text()

HDR = """; qk_norm attention: q,k L2-normalised, softmax(t * qn.kn) @ v.   generated by gen/gen.py (hand-written generator)
; Kernarg: q(0) k(8) v(16) t(24) out(32) debug(40) ws(48)
; @launch grid=(256,1,1) block=(512,1,1) lds=%d
.amdgcn_target "amdgcn-amd-amdhsa--gfx950"
.text
.globl standalone__qk_norm__prompt_kernel
.p2align 8
.type standalone__qk_norm__prompt_kernel,@function
standalone__qk_norm__prompt_kernel:
""" % LDS_BYTES
FTR = """.section .rodata,"a"
.p2align 6
.amdhsa_kernel standalone__qk_norm__prompt_kernel
  .amdhsa_next_free_vgpr 256
  .amdhsa_next_free_sgpr 64
  .amdhsa_accum_offset 256
  .amdhsa_group_segment_fixed_size 0
  .amdhsa_kernarg_size 56
  .amdhsa_user_sgpr_count 2
  .amdhsa_user_sgpr_kernarg_segment_ptr 1
  .amdhsa_system_sgpr_workgroup_id_x 1
.end_amdhsa_kernel
"""
if __name__=="__main__":
    out = sys.argv[1] if len(sys.argv)>1 else "standalone__qk_norm__prompt.s"
    open(out,"w").write(HDR+gen()+FTR)
```

```python
import sys

HEAD_BYTES = 2048*56
CHUNK = 256
NCH = 8
CH_BYTES = CHUNK*56
KSLOT = 16384
VBASE = 32768
LDS_BYTES = 65536

class A:
    def __init__(s): s.l=[]
    def __call__(s, x):
        for y in x.split("\n"):
            s.l.append("    "+y.strip())
    def label(s, x): s.l.append(x+":")
    def text(s): return "\n".join(s.l)+"\n"

def vr(b,n): return f"v[{b}:{b+n-1}]"

S_HEAD=14; S_QUART=15; S_WAVE=16; S_T=17; S_TMP=18; S_TMP2=19
SRD_Q=20; SRD_K=24; SRD_V=28; SRD_O=32
S_SLOW=36
S_CNT=37
S_SOFF=38
S_MASK=39
S_EXEC=40
S_J=[42,43,44,45]
S_HB=46

V_KA=1; V_VA=2; V_OO=3
KF=[4,12]; VF=[20,28]; SS=[36,52]; PP=[68,76]; BIAS=84
QF=[100,108,116,124]; OO=[132,148,164,180]
V_M=[196,197,198,199]; V_C=200
TMP=204

def norm_row(a, raw, tmp, scale_reg=None, acc=None):
    a0,a1,r0,r1 = acc,acc+1,acc+2,acc+3
    a(f"v_dot2_f32_bf16 v{a0}, v{raw}, v{raw}, 0")
    a(f"v_dot2_f32_bf16 v{a1}, v{raw+1}, v{raw+1}, 0")
    for i in range(2,14):
        acc_r = a0 if i%2==0 else a1
        a(f"v_dot2_f32_bf16 v{acc_r}, v{raw+i}, v{raw+i}, v{acc_r}")
    for i in range(14):
        a(f"v_lshlrev_b32 v{tmp+2*i}, 16, v{raw+i}")
        a(f"v_and_b32 v{tmp+2*i+1}, s{S_MASK}, v{raw+i}")
    a(f"v_add_f32 v{a0}, v{a0}, v{a1}")
    a(f"v_sqrt_f32 v{a0}, v{a0}")
    a("s_nop 0")
    a(f"v_add_f32 v{a0}, 0x358637bd, v{a0}")
    a(f"v_rcp_f32 v{r0}, v{a0}")
    a("s_nop 0")
    if scale_reg is not None:
        a(f"v_mul_f32 v{r0}, v{r0}, v{scale_reg}")
    for i in range(14):
        a(f"v_pk_mul_f32 {vr(tmp+2*i,2)}, {vr(tmp+2*i,2)}, {vr(r0,2)} op_sel_hi:[1,0]")
    for i in range(14):
        a(f"v_cvt_pk_f16_f32 v{raw+i}, v{tmp+2*i}, v{tmp+2*i+1}")

def load_row(a, dst, voff, srd, soff):
    a(f"buffer_load_dwordx4 {vr(dst,4)}, v{voff}, s[{srd}:{srd+3}], {soff} offen")
    a(f"buffer_load_dwordx4 {vr(dst+4,4)}, v{voff}, s[{srd}:{srd+3}], {soff} offen offset:16")
    a(f"buffer_load_dwordx4 {vr(dst+8,4)}, v{voff}, s[{srd}:{srd+3}], {soff} offen offset:32")
    a(f"buffer_load_dwordx2 {vr(dst+12,2)}, v{voff}, s[{srd}:{srd+3}], {soff} offen offset:48")

def k_reads(T, buf):
    off=T*2048
    return [f"ds_read_b128 {vr(KF[buf],4)}, v{V_KA} offset:{off}",
            f"ds_read_b128 {vr(KF[buf]+4,4)}, v{V_KA} offset:{off+1024}"]
def v_reads(T, buf):
    off=VBASE+T*2048
    return [f"ds_read_b64_tr_b16 {vr(VF[buf]+2*i,2)}, v{V_VA} offset:{off+512*i}" for i in range(4)]

def main_loop(a, slow, tag):
    NQ=4; NT=8; N=NQ*NT
    nv={}
    def add(T,j,g,ins): nv.setdefault(((T*NQ+j)%N,g),[]).append(ins)
    for T in range(NT):
        Tn=(T+1)%NT
        kr=k_reads(Tn,Tn%2); vrd=v_reads(Tn,Tn%2)
        add(T,0,3,"s_waitcnt lgkmcnt(0)")
        if T==NT-1:
            if STAMPS:
                add(T,1,0,"s_memtime s[48:49]")
                add(T,1,0,"s_waitcnt lgkmcnt(0)")
            add(T,1,0,"s_barrier")
            if "clk" in FLAGS and not slow:
                add(T,1,0,"s_memtime s[48:49]")
                add(T,1,0,"s_memrealtime s[50:51]")
                add(T,1,0,"s_waitcnt lgkmcnt(0)")
                add(T,1,0,"v_mov_b32 v252, s48")
                add(T,1,0,"v_mov_b32 v253, s50")
                add(T,1,0,"s_mov_b64 exec, 1")
                add(T,1,0,"buffer_store_dwordx2 v[252:253], v254, s[52:55], 0 offen")
                add(T,1,0,"s_mov_b64 exec, -1")
                add(T,1,0,"v_add_u32 v254, 8, v254")
            if STAMPS:
                add(T,1,0,"s_memtime s[50:51]")
                add(T,1,0,"s_waitcnt lgkmcnt(0)")
                add(T,1,0,"s_sub_u32 s50, s50, s48")
                add(T,1,0,"s_add_u32 s56, s56, s50")
            add(T,1,0,f"v_xor_b32 v{V_KA}, {KSLOT}, v{V_KA}")
            add(T,1,0,f"v_xor_b32 v{V_VA}, {KSLOT}, v{V_VA}")
        add(T,1,1,kr[0]); add(T,1,2,kr[1]); add(T,1,3,vrd[0])
        add(T,2,0,vrd[1]); add(T,2,1,vrd[2]); add(T,2,2,vrd[3])
        add(T,3,0,"s_waitcnt lgkmcnt(4)")
    a.label(f"L_main_{tag}")
    for n in range(N):
        T,j=divmod(n,NQ)
        T1,j1=divmod((n+1)%N,NQ)
        Tm,jm=divmod((n-1)%N,NQ)
        s=SS[n%2]; s1=SS[(n+1)%2]; p=PP[n%2]; pm=PP[(n-1)%2]; sm=SS[(n-1)%2]
        cin = "0" if slow else vr(BIAS,16)
        M=[f"v_mfma_f32_32x32x16_bf16 {vr(OO[jm],16)}, {vr(VF[Tm%2],4)}, {vr(pm,4)}, {vr(OO[jm],16)}",
           f"v_mfma_f32_32x32x16_f16 {vr(s1,16)}, {vr(KF[T1%2],4)}, {vr(QF[j1],4)}, {cin}",
           f"v_mfma_f32_32x32x16_f16 {vr(s1,16)}, {vr(KF[T1%2]+4,4)}, {vr(QF[j1]+4,4)}, {vr(s1,16)}",
           f"v_mfma_f32_32x32x16_bf16 {vr(OO[jm],16)}, {vr(VF[Tm%2]+4,4)}, {vr(pm+4,4)}, {vr(OO[jm],16)}"]
        def E(i):
            if slow:
                return [f"v_mul_f32 v{s+i}, v{s+i}, v{V_C}", f"v_sub_f32 v{s+i}, v{s+i}, v{V_M[j]}", f"v_exp_f32 v{s+i}, v{s+i}"]
            if "noexp" in FLAGS: return [f"v_mov_b32 v{s+i}, v{s+i}"]
            return [f"v_exp_f32 v{s+i}, v{s+i}"]
        def C(i):
            if i<0: return [f"v_cvt_pk_bf16_f32 v{pm+7}, v{sm+14}, v{sm+15}"]
            return [f"v_cvt_pk_bf16_f32 v{p+i}, v{s+2*i}, v{s+2*i+1}"]
        for g in range(4):
            if ("nopv" in FLAGS and g in (0,3)) or ("noqk" in FLAGS and g in (1,2)): a("s_nop 0")
            else: a(M[g])
            for x in nv.get((n,g),[]): a(x)
            for x in E(4*g)+E(4*g+1)+C(2*g-1)+E(4*g+2)+E(4*g+3)+C(2*g): a(x)
    a(f"s_sub_u32 s{S_CNT}, s{S_CNT}, 1")
    a(f"s_cmp_lg_u32 s{S_CNT}, 0")
    a(f"s_cbranch_scc1 L_main_{tag}")
    n=N-1; T,j=divmod(n,NQ); s=SS[n%2]; p=PP[n%2]
    a(f"v_cvt_pk_bf16_f32 v{p+7}, v{s+14}, v{s+15}")
    a("s_nop 1")
    a(f"v_mfma_f32_32x32x16_bf16 {vr(OO[j],16)}, {vr(VF[T%2],4)}, {vr(p,4)}, {vr(OO[j],16)}")
    a(f"v_mfma_f32_32x32x16_bf16 {vr(OO[j],16)}, {vr(VF[T%2]+4,4)}, {vr(p+4,4)}, {vr(OO[j],16)}")

def pipeline_fill(a, slow):
    a("s_barrier")
    for x in k_reads(0,0)+v_reads(0,0): a(x)
    a("s_waitcnt lgkmcnt(0)")
    cin = "0" if slow else vr(BIAS,16)
    a(f"v_mfma_f32_32x32x16_f16 {vr(SS[0],16)}, {vr(KF[0],4)}, {vr(QF[0],4)}, {cin}")
    a(f"v_mfma_f32_32x32x16_f16 {vr(SS[0],16)}, {vr(KF[0]+4,4)}, {vr(QF[0]+4,4)}, {vr(SS[0],16)}")
    a("s_nop 15")

STAMPS = False
FLAGS = set()
def stamp(a,k,real=False):
    if not STAMPS: return
    op = "s_memrealtime" if real else "s_memtime"
    a(f"{op} s[{64+2*k}:{65+2*k}]")
def stamp_flush(a):
    if not STAMPS: return
    stamp(a,15,True)
    a("s_load_dwordx2 s[52:53], s[0:1], 48")
    a("s_waitcnt lgkmcnt(0)")
    a("s_add_u32 s74, s56, s64")
    a("s_and_b32 s53, s53, 0xffff")
    a("s_mov_b32 s54, 0x100000")
    a("s_mov_b32 s55, 0x00020000")
    a(f"s_lshl_b32 s48, s2, 3")
    a(f"s_add_u32 s48, s48, s{S_WAVE}")
    a(f"s_lshl_b32 s48, s48, 6")
    a("v_mov_b32 v250, s48")
    a("s_mov_b64 exec, 1")
    for k in range(16):
        a(f"v_mov_b32 v251, s{64+2*k}")
        a(f"buffer_store_dword v251, v250, s[52:55], 0 offen offset:{4*k}")
        a("s_nop 1")
def gen():
    a=A()
    if STAMPS:
        for k in range(16): a(f"s_mov_b32 s{64+2*k}, 0")
        a("s_mov_b32 s56, 0")
    stamp(a,0); stamp(a,14,True)
    a("s_cmp_ge_u32 s2, 256")
    a("s_cbranch_scc1 L_end")
    a("s_load_dwordx8 s[4:11], s[0:1], 0")
    a("s_load_dwordx2 s[12:13], s[0:1], 32")
    a(f"v_lshrrev_b32 v1, 6, v0")
    a(f"s_and_b32 s{S_HEAD}, s2, 7")
    a(f"s_lshl_b32 s{S_HEAD}, s{S_HEAD}, 3")
    a(f"s_lshr_b32 s{S_TMP}, s2, 5")
    a(f"s_add_u32 s{S_HEAD}, s{S_HEAD}, s{S_TMP}")
    a(f"v_readfirstlane_b32 s{S_WAVE}, v1")
    a(f"s_lshr_b32 s{S_QUART}, s2, 3")
    a(f"s_and_b32 s{S_QUART}, s{S_QUART}, 3")
    a(f"s_mul_i32 s{S_HB}, s{S_HEAD}, {HEAD_BYTES}")
    a(f"s_mov_b32 s{S_MASK}, 0xffff0000")
    a(f"s_and_b32 s{S_TMP}, s{S_HEAD}, 15")
    a(f"s_lshr_b32 s{S_TMP2}, s{S_TMP}, 1")
    a(f"s_lshl_b32 s{S_TMP2}, s{S_TMP2}, 2")
    a("s_waitcnt lgkmcnt(0)")
    stamp(a,6)
    a(f"s_load_dword s{S_T}, s[10:11], s{S_TMP2}")
    for srd,p in ((SRD_Q,4),(SRD_K,6),(SRD_V,8),(SRD_O,12)):
        a(f"s_add_u32 s{srd}, s{p}, s{S_HB}")
        a(f"s_addc_u32 s{srd+1}, s{p+1}, 0")
        a(f"s_and_b32 s{srd+1}, s{srd+1}, 0xffff")
        a(f"s_mov_b32 s{srd+2}, {HEAD_BYTES}")
        a(f"s_mov_b32 s{srd+3}, 0x00020000")
    a(f"v_and_b32 v1, 63, v0")
    a(f"s_cmp_ge_u32 s{S_WAVE}, 4")
    a("s_cbranch_scc1 L_helper")

    a(f"s_lshl_b32 s{S_TMP2}, s{S_QUART}, 9")
    a(f"s_lshl_b32 s{S_SOFF}, s{S_WAVE}, 7")
    a(f"s_add_u32 s{S_SOFF}, s{S_SOFF}, s{S_TMP2}")
    a(f"v_add_u32 v2, s{S_SOFF}, v1")
    a(f"v_mul_u32_u24 v2, 56, v2")
    a(f"s_mov_b32 s{S_TMP2}, {64*56}")
    RAW0=TMP; RAW1=TMP+16
    load_row(a, RAW0, 2, SRD_Q, "0")
    load_row(a, RAW1, 2, SRD_Q, f"s{S_TMP2}")
    stamp(a,11)
    a(f"v_and_b32 v3, 31, v1")
    a(f"v_add_u32 v3, s{S_SOFF}, v3")
    a(f"v_mul_u32_u24 v3, 56, v3")
    a(f"v_lshrrev_b32 v4, 5, v1")
    a(f"v_lshl_add_u32 v{V_OO}, v4, 3, v3")
    a("v_lshrrev_b32 v4, 5, v1")
    a("v_bfe_u32 v5, v1, 2, 2")
    a("v_lshl_add_u32 v4, v4, 2, v5")
    a("v_bfe_u32 v5, v1, 4, 1")
    a("v_bfe_u32 v6, v1, 1, 1")
    a("v_lshl_add_u32 v5, v5, 1, v6")
    a("v_bfe_u32 v6, v4, 1, 2")
    a("v_xor_b32 v5, v5, v6")
    a("v_lshlrev_b32 v5, 4, v5")
    a("v_lshl_add_u32 v5, v4, 6, v5")
    a("v_and_b32 v6, 1, v1")
    a(f"v_lshl_add_u32 v{V_VA}, v6, 3, v5")
    a(f"v_lshlrev_b32 v{V_KA}, 4, v1")
    for j in range(4): a(f"s_mov_b32 s{S_J[j]}, {1792*j}")
    for j in range(4):
        for r in range(16): a(f"v_mov_b32 v{OO[j]+r}, 0")
    for r in range(8):
        a(f"v_mov_b32 v{PP[1]+r}, 0")
        a(f"v_mov_b32 v{VF[1]+r}, 0")
    a(f"v_mov_b32 v{SS[1]+14}, 0")
    a(f"v_mov_b32 v{SS[1]+15}, 0")
    for r in (14,15):
        a(f"v_mov_b32 v{RAW0+r}, 0")
        a(f"v_mov_b32 v{RAW1+r}, 0")
    stamp(a,10)
    a("s_waitcnt lgkmcnt(0)")
    stamp(a,7)
    a(f"s_and_b32 s{S_TMP}, s{S_HEAD}, 1")
    a(f"s_lshl_b32 s{S_TMP}, s{S_TMP}, 4")
    a(f"s_lshr_b32 s{S_T}, s{S_T}, s{S_TMP}")
    a(f"s_and_b32 s{S_T}, s{S_T}, 0xffff")
    a(f"s_and_b32 s{S_TMP}, s{S_T}, 0x7fff")
    a(f"s_cmp_gt_u32 s{S_TMP}, 0x4130")
    a(f"s_cselect_b32 s{S_SLOW}, 1, 0")
    a(f"s_lshl_b32 s{S_T}, s{S_T}, 16")
    a(f"v_mov_b32 v{V_C}, s{S_T}")
    a(f"v_mul_f32 v{V_C}, 0x3fb8aa3b, v{V_C}")
    a(f"v_and_b32 v{V_C+1}, 0x7fffffff, v{V_C}")
    a(f"v_xor_b32 v{V_C+1}, 0x80000000, v{V_C+1}")
    for r in range(16): a(f"v_mov_b32 v{BIAS+r}, v{V_C+1}")
    a(f"v_mov_b32 v{V_C+2}, v{V_C}")
    a(f"s_cmp_eq_u32 s{S_SLOW}, 0")
    a("s_cbranch_scc1 L_qscale")
    a(f"v_mov_b32 v{V_C+2}, 1.0")
    a.label("L_qscale")
    T28=36; ACC=8
    a("s_waitcnt vmcnt(4)")
    stamp(a,8)
    norm_row(a, RAW0, T28, scale_reg=V_C+2, acc=ACC)
    a("s_waitcnt vmcnt(0)")
    stamp(a,9)
    norm_row(a, RAW1, T28, scale_reg=V_C+2, acc=ACC)
    a("s_nop 1")
    for RAW in (RAW0,RAW1):
        for i in range(4):
            a(f"v_permlane32_swap_b32 v{RAW+i}, v{RAW+4+i}")
            a(f"v_permlane32_swap_b32 v{RAW+8+i}, v{RAW+12+i}")
    a("s_nop 1")
    for t,RAW in ((0,RAW0),(2,RAW1)):
        for i in range(4):
            a(f"v_mov_b32 v{QF[t]+i}, v{RAW+i}")
            a(f"v_mov_b32 v{QF[t]+4+i}, v{RAW+8+i}")
            a(f"v_mov_b32 v{QF[t+1]+i}, v{RAW+4+i}")
            a(f"v_mov_b32 v{QF[t+1]+4+i}, v{RAW+12+i}")
    a(f"s_cmp_lg_u32 s{S_SLOW}, 0")
    a("s_cbranch_scc1 L_slow")
    stamp(a,1)
    if "clk" in FLAGS:
        a("s_load_dwordx2 s[52:53], s[0:1], 48")
        a("s_waitcnt lgkmcnt(0)")
        a("s_and_b32 s53, s53, 0xffff")
        a("s_mov_b32 s54, 0x1000000")
        a("s_mov_b32 s55, 0x00020000")
        a(f"s_lshl_b32 s48, s2, 3")
        a(f"s_add_u32 s48, s48, s{S_WAVE}")
        a(f"s_lshl_b32 s48, s48, 7")
        a("s_add_u32 s48, s48, 0x100000")
        a("v_mov_b32 v254, s48")
        a("s_memtime s[48:49]")
        a("s_memrealtime s[50:51]")
        a("s_waitcnt lgkmcnt(0)")
        a("v_mov_b32 v252, s48")
        a("v_mov_b32 v253, s50")
        a("s_mov_b64 exec, 1")
        a("buffer_store_dwordx2 v[252:253], v254, s[52:55], 0 offen")
        a("s_mov_b64 exec, -1")
        a("v_add_u32 v254, 8, v254")
    pipeline_fill(a, False)
    stamp(a,2)
    a(f"s_mov_b32 s{S_CNT}, {NCH}")
    main_loop(a, False, "fast")
    stamp(a,3)
    a.label("L_epilogue")
    a("s_nop 15")
    a("s_nop 3")
    X=TMP; Y=TMP+1; R=TMP+2
    for j in range(4):
        o=OO[j]
        a(f"v_mov_b32 v{X}, v{o+12}")
        a(f"v_mov_b32 v{Y}, v{o+12}")
        a("s_nop 1")
        a(f"v_permlane32_swap_b32 v{X}, v{Y}")
        a("s_nop 1")
        a(f"v_rcp_f32 v{R}, v{Y}")
        a("s_nop 0")
        for r in range(16): a(f"v_mul_f32 v{o+r}, v{o+r}, v{R}")
        D=TMP+4+8*j
        for r in range(8): a(f"v_cvt_pk_bf16_f32 v{D+r}, v{o+2*r}, v{o+2*r+1}")
        for q in range(3):
            a(f"buffer_store_dwordx2 {vr(D+2*q,2)}, v{V_OO}, s[{SRD_O}:{SRD_O+3}], s{S_J[j]} offen offset:{16*q}")
        a("s_mov_b32 exec_hi, 0")
        a(f"buffer_store_dwordx2 {vr(D+6,2)}, v{V_OO}, s[{SRD_O}:{SRD_O+3}], s{S_J[j]} offen offset:48")
        a("s_mov_b32 exec_hi, -1")
    stamp(a,4)
    stamp_flush(a)
    a("s_endpgm")

    a.label("L_slow")
    for j in range(4): a(f"v_mov_b32 v{V_M[j]}, 0xff800000")
    a(f"s_mov_b32 s{S_CNT}, {NCH}")
    a.label("L_max_chunk")
    a("s_barrier")
    for T in range(8):
        for x in k_reads(T,0): a(x)
        a("s_waitcnt lgkmcnt(0)")
        for j in range(4):
            a(f"v_mfma_f32_32x32x16_f16 {vr(SS[0],16)}, {vr(KF[0],4)}, {vr(QF[j],4)}, 0")
            a(f"v_mfma_f32_32x32x16_f16 {vr(SS[0],16)}, {vr(KF[0]+4,4)}, {vr(QF[j]+4,4)}, {vr(SS[0],16)}")
            a("s_nop 15")
            a("s_nop 3")
            for r in range(16):
                a(f"v_mul_f32 v{SS[0]+r}, v{SS[0]+r}, v{V_C}")
                a(f"v_max_f32 v{V_M[j]}, v{V_M[j]}, v{SS[0]+r}")
            a("s_nop 7")
    a(f"v_xor_b32 v{V_KA}, {KSLOT}, v{V_KA}")
    a(f"s_sub_u32 s{S_CNT}, s{S_CNT}, 1")
    a(f"s_cmp_lg_u32 s{S_CNT}, 0")
    a("s_cbranch_scc1 L_max_chunk")
    for j in range(4):
        a(f"v_mov_b32 v{TMP}, v{V_M[j]}")
        a(f"v_mov_b32 v{TMP+1}, v{V_M[j]}")
        a("s_nop 1")
        a(f"v_permlane32_swap_b32 v{TMP}, v{TMP+1}")
        a("s_nop 1")
        a(f"v_max_f32 v{V_M[j]}, v{TMP}, v{TMP+1}")
    a(f"v_mov_b32 v{SS[1]+14}, 0")
    a(f"v_mov_b32 v{SS[1]+15}, 0")
    pipeline_fill(a, True)
    a(f"s_mov_b32 s{S_CNT}, {NCH}")
    main_loop(a, True, "slow")
    a("s_branch L_epilogue")

    a.label("L_helper")
    if "hprio" in FLAGS: a("s_setprio 3")
    a(f"s_sub_u32 s{S_TMP}, s{S_WAVE}, 4")
    a(f"s_lshl_b32 s{S_TMP}, s{S_TMP}, 6")
    a(f"v_add_u32 v2, s{S_TMP}, v1")
    a(f"v_mul_u32_u24 v3, 56, v2")
    HK=[8,40]; HV=[24,56]; HT=72; HACC=100
    load_row(a, HK[0], 3, SRD_K, "0")
    load_row(a, HV[0], 3, SRD_V, "0")
    a(f"s_mov_b32 s{S_SOFF}, {CH_BYTES}")
    load_row(a, HK[1], 3, SRD_K, f"s{S_SOFF}")
    load_row(a, HV[1], 3, SRD_V, f"s{S_SOFF}")
    a("v_lshrrev_b32 v4, 5, v2")
    a("v_and_b32 v5, 31, v2")
    a("v_lshlrev_b32 v5, 4, v5")
    a("v_lshl_add_u32 v4, v4, 11, v5")
    a("v_bfe_u32 v5, v2, 1, 2")
    for p in range(4):
        a(f"v_xor_b32 v6, {p}, v5")
        a("v_lshlrev_b32 v6, 4, v6")
        a(f"v_lshl_add_u32 v{104+p}, v2, 6, v6")
    for st in (0,1):
        a(f"v_mov_b32 v{HK[st]+14}, 0")
        a(f"v_mov_b32 v{HK[st]+15}, 0")
        a(f"v_mov_b32 v{HV[st]+14}, 0x3f80")
        a(f"v_mov_b32 v{HV[st]+15}, 0")
    a("s_waitcnt lgkmcnt(0)")
    a(f"s_and_b32 s{S_TMP}, s{S_HEAD}, 1")
    a(f"s_lshl_b32 s{S_TMP}, s{S_TMP}, 4")
    a(f"s_lshr_b32 s{S_T}, s{S_T}, s{S_TMP}")
    a(f"s_and_b32 s{S_TMP}, s{S_T}, 0x7fff")
    a(f"s_cmp_gt_u32 s{S_TMP}, 0x4130")
    a(f"s_cselect_b32 s{S_CNT}, {NCH}, {NCH//2}")
    a(f"s_mov_b32 s{S_TMP2}, 2")
    a.label("L_hloop")
    for st in (0,1):
        a("s_waitcnt vmcnt(8)")
        if st==0 and STAMPS:
            a(f"s_cmp_lg_u32 s{S_TMP2}, 2")
            a("s_cbranch_scc1 L_nostamp")
            stamp(a,1)
            a.label("L_nostamp")
        norm_row(a, HK[st], HT, acc=HACC)
        for p in range(4):
            a(f"ds_write_b128 v4, {vr(HK[st]+4*p,4)} offset:{st*KSLOT+512*p}")
        for p in range(4):
            a(f"ds_write_b128 v{104+p}, {vr(HV[st]+4*p,4)} offset:{VBASE+st*KSLOT}")
        a(f"s_and_b32 s{S_TMP}, s{S_TMP2}, 7")
        a(f"s_mul_i32 s{S_SOFF}, s{S_TMP}, {CH_BYTES}")
        a(f"s_add_u32 s{S_TMP2}, s{S_TMP2}, 1")
        a("s_waitcnt lgkmcnt(0)")
        load_row(a, HK[st], 3, SRD_K, f"s{S_SOFF}")
        load_row(a, HV[st], 3, SRD_V, f"s{S_SOFF}")
        if st==0 and STAMPS:
            a(f"s_cmp_lg_u32 s{S_TMP2}, 3")
            a("s_cbranch_scc1 L_nostamp2")
            stamp(a,2)
            a.label("L_nostamp2")
        a("s_barrier")
    a(f"s_sub_u32 s{S_CNT}, s{S_CNT}, 1")
    a(f"s_cmp_lg_u32 s{S_CNT}, 0")
    a("s_cbranch_scc1 L_hloop")
    a("s_barrier")
    stamp(a,4)
    stamp_flush(a)
    a.label("L_end")
    a("s_endpgm")
    return a.text()

HDR = """; qk_norm attention: q,k L2-normalised, softmax(t * qn.kn) @ v.   generated by gen/gen.py (hand-written generator)
; Kernarg: q(0) k(8) v(16) t(24) out(32) debug(40) ws(48)
; @launch grid=(256,1,1) block=(512,1,1) lds=%d
.amdgcn_target "amdgcn-amd-amdhsa--gfx950"
.text
.globl standalone__qk_norm__prompt_kernel
.p2align 8
.type standalone__qk_norm__prompt_kernel,@function
standalone__qk_norm__prompt_kernel:
""" % LDS_BYTES
FTR = """.section .rodata,"a"
.p2align 6
.amdhsa_kernel standalone__qk_norm__prompt_kernel
  .amdhsa_next_free_vgpr 256
  .amdhsa_next_free_sgpr 100
  .amdhsa_accum_offset 256
  .amdhsa_group_segment_fixed_size 0
  .amdhsa_kernarg_size 56
  .amdhsa_user_sgpr_count 2
  .amdhsa_user_sgpr_kernarg_segment_ptr 1
  .amdhsa_system_sgpr_workgroup_id_x 1
.end_amdhsa_kernel
"""
if __name__=="__main__":
    args=[x for x in sys.argv[1:] if not x.startswith("--")]
    import atexit
    STAMPS = "--stamps" in sys.argv
    FLAGS = set(x[2:] for x in sys.argv[1:] if x.startswith("--"))
    out = args[0] if args else "standalone__qk_norm__prompt.s"
    txt=HDR+gen()+FTR
    if "qkbf16" in FLAGS:
        txt=txt.replace("v_mfma_f32_32x32x16_f16","v_mfma_f32_32x32x16_bf16").replace("v_cvt_pk_f16_f32","v_cvt_pk_bf16_f32")
    open(out,"w").write(txt)
```
